```python
import torch

def _softmax(x, axis=-1):
    return torch.softmax(x, dim=axis)
def _gelu(x):
    return torch.nn.functional.gelu(x, approximate="tanh")
def _silu(x):
    return torch.nn.functional.silu(x)
def _sigmoid(x):
    return torch.sigmoid(x)
def _layernorm(x, axis=-1, eps=1e-5):
    m = x.mean(dim=axis, keepdim=True)
    v = x.var(dim=axis, keepdim=True, unbiased=False)
    return (x - m) / torch.sqrt(v + eps)
def _scatter_add(tgt, idx, src, axis=0):
    return tgt.clone().index_add_(axis, idx, src)
def _segment_sum(src, seg, n):
    out = torch.zeros((n,) + src.shape[1:], dtype=src.dtype)
    return out.index_add_(0, seg, src)
def _pad(x, pw):
    flat = tuple(v for pair in reversed(pw) for v in pair)
    return torch.nn.functional.pad(x, flat)

kernel_name = 'interleave_layers__sliding_block_cached__dense_activation_silu__decode'

def setup_inputs():

    _w = (lambda a: (lambda t: t.to(torch.bfloat16) if t.is_floating_point() else t)(torch.as_tensor(a)))
    def _A_setup():
        B, Sq, D = 1, 1, 448
        Hq, Hkv, Sk, Dh = 16, 8, 65536, 256
        assert Hq % Hkv == 0, (Hq, Hkv)
        return {
            "x": _w((lambda *s: torch.randn(*s, dtype=torch.bfloat16) * 0.05)(B, Sq, D)),
            "k_cache": _w((lambda *s: torch.randn(*s, dtype=torch.bfloat16) * 0.8)(B, Hkv, Sk, Dh)),
            "v_cache": _w((lambda *s: torch.randn(*s, dtype=torch.bfloat16) * 1.6)(B, Hkv, Sk, Dh)),
            "wq": _w((lambda *s: torch.randn(*s, dtype=torch.bfloat16) * 0.8)(D, Hq * Dh) * (D ** -0.5)),
            "wo": _w((lambda *s: torch.randn(*s, dtype=torch.bfloat16) * 1.6)(Hq * Dh, D) * ((Hq * Dh) ** -0.5)),
        }
    _A_in = _A_setup()

    def _B_setup():
        B, S, D, F = 1, 1, 448, 1792
        return {
            "x": _w((lambda *s: torch.randn(*s, dtype=torch.bfloat16) * 0.05)(B, S, D)),
            "w1": _w((lambda *s: torch.randn(*s, dtype=torch.bfloat16) * 0.4)(D, F) * (D ** -0.5)),
            "w2": _w((lambda *s: torch.randn(*s, dtype=torch.bfloat16) * 0.4)(F, D) * (F ** -0.5)),
        }
    _B_in = _B_setup()

    return {
        "A_x": _A_in["x"],
        "A_k_cache": _A_in["k_cache"],
        "A_v_cache": _A_in["v_cache"],
        "A_wq": _A_in["wq"],
        "A_wo": _A_in["wo"],
        "B_x": _B_in["x"],
        "B_w1": _B_in["w1"],
        "B_w2": _B_in["w2"],
    }

def reference(A_x, A_k_cache, A_v_cache, A_wq, A_wo, B_x, B_w1, B_w2):
    def _A_ref(x, k_cache, v_cache, wq, wo):
        B, Sq, D = x.shape
        Hq, Dh = 16, 256
        Hkv, Sk = k_cache.shape[1], k_cache.shape[2]
        W = min(4096, max(256, Sk // 4))
        rep = Hq // Hkv
        q = (lambda x, *d: x.permute(*d))((x @ wq).reshape(B, Sq, Hq, Dh), 0, 2, 1, 3)
        k = (lambda x, n, axis: torch.repeat_interleave(x, n, dim=axis))(k_cache[:, :, Sk - W:, :], rep, axis=1)
        v = (lambda x, n, axis: torch.repeat_interleave(x, n, dim=axis))(v_cache[:, :, Sk - W:, :], rep, axis=1)
        scores = torch.einsum("bhqd,bhkd->bhqk", q, k) * (Dh ** -0.5)
        p = _softmax(scores, axis=-1)
        o = torch.einsum("bhqk,bhkd->bhqd", p, v)
        return (lambda x, *d: x.permute(*d))(o, 0, 2, 1, 3).reshape(B, Sq, Hq * Dh) @ wo

    def _B_ref(x, w1, w2):
        h = torch.einsum("bsd,df->bsf", x, w1)
        h = _silu(h)
        out = torch.einsum("bsf,fd->bsd", h, w2)
        return out

    x = A_x
    x = x + _A_ref(_layernorm(x, axis=-1), A_k_cache, A_v_cache, A_wq, A_wo)
    x = x + _B_ref(_layernorm(x, axis=-1), B_w1, B_w2)
    x = x + _A_ref(_layernorm(x, axis=-1), A_k_cache, A_v_cache, A_wq, A_wo)
    x = x + _B_ref(_layernorm(x, axis=-1), B_w1, B_w2)
    return x
```

```python
from rt import *
SRC = """; @launch grid=(1,1,1) block=(64,1,1) lds=4096
.amdgcn_target "amdgcn-amd-amdhsa--gfx950"
.text
.globl xl_kernel
.p2align 8
.type xl_kernel,@function
xl_kernel:
    s_load_dwordx2 s[8:9], s[0:1], 0
    v_lshlrev_b32 v1, 6, v0
    v_mov_b32 v2, v0
    v_add_u32 v3, 100, v0
    v_mov_b32 v4, -1
    v_mov_b32 v5, -1
    v_mov_b32 v6, -1
    v_mov_b32 v7, 1000
    v_mov_b32 v8, v2
    v_mov_b32 v9, v3
    v_mov_b32 v10, v2
    v_mov_b32 v11, v3
    s_nop 2
    v_mov_b32_dpp v4, v2 row_shl:4 row_mask:0xf bank_mask:0xf
    v_mov_b32_dpp v5, v2 row_ror:4 row_mask:0xf bank_mask:0xf
    v_mov_b32_dpp v6, v2 row_newbcast:3 row_mask:0xf bank_mask:0xf
    v_add_u32_dpp v7, v2, v7 row_bcast:15 row_mask:0xa bank_mask:0xf
    v_permlane16_swap_b32 v8, v9
    v_permlane32_swap_b32 v10, v11
    v_lshlrev_b32 v20, 3, v0
    v_lshlrev_b32 v21, 2, v0
    v_add_u32 v22, 1, v21
    v_lshl_or_b32 v24, v22, 16, v21
    v_add_u32 v25, 0x00020002, v24
    ds_write_b64 v20, v[24:25]
    s_waitcnt lgkmcnt(0)
    ds_read_b64_tr_b16 v[12:13], v20
    v_mov_b32 v14, 0
    v_mov_b32 v15, 0
    s_waitcnt lgkmcnt(0)
    global_store_dwordx4 v1, v[4:7], s[8:9]
    global_store_dwordx4 v1, v[8:11], s[8:9] offset:16
    global_store_dwordx4 v1, v[12:15], s[8:9] offset:32
    s_endpgm
.section .rodata,"a"
.p2align 6
.amdhsa_kernel xl_kernel
  .amdhsa_next_free_vgpr 64
  .amdhsa_next_free_sgpr 64
  .amdhsa_accum_offset 64
  .amdhsa_group_segment_fixed_size 0
  .amdhsa_kernarg_size 16
  .amdhsa_user_sgpr_count 2
  .amdhsa_user_sgpr_kernarg_segment_ptr 1
  .amdhsa_system_sgpr_workgroup_id_x 1
.end_amdhsa_kernel
"""
np.set_printoptions(linewidth=250)
open("xl_x.s","w").write(SRC)
co,(g,blk,lds) = build("xl_x.s","xl_kernel",1)
if len(sys.argv)>1: raise SystemExit
k = AsmKernel(co,"xl_kernel")
out = DeviceBuffer(8192)
k.launch(g,blk,kargs([out.ptr]),lds); sync()
o = out.to_numpy(np.int32,(64,16))
for j,n in enumerate(["row_shl4","row_ror4","newbcast3","bcast15 mask a","p16 dst","p16 src","p32 dst","p32 src"]):
    print(n, o[:,j])
t = o[:,8:10].copy().view(np.uint16)
print("tr:"); print(t[:32])
```

```python
import re

def regs_of(tok):
    tok = tok.strip()
    tok = tok.lstrip('-')
    if tok.startswith('abs(') or tok.startswith('|'):
        tok = tok.replace('abs(', '').replace(')', '').replace('|', '')
    m = re.fullmatch(r'([vsa])(\d+)', tok)
    if m: return {tok}
    m = re.fullmatch(r'([vsa])\[(\d+):(\d+)\]', tok)
    if m: return {f"{m.group(1)}{k}" for k in range(int(m.group(2)), int(m.group(3)) + 1)}
    if tok in ('vcc', 'vcc_lo', 'vcc_hi'): return {'vcc'}
    if tok in ('exec', 'exec_lo', 'exec_hi'): return {'exec'}
    if tok == 'm0': return {'m0'}
    return set()

TRANS = ('v_exp_f32', 'v_log_f32', 'v_rcp_f32', 'v_rsq_f32', 'v_sqrt_f32')

class Ins:
    def __init__(self, text):
        self.text = text
        t = text.split(';')[0].strip()
        parts = t.split(None, 1)
        self.op = parts[0]
        rest = parts[1] if len(parts) > 1 else ''
        ops, depth, cur = [], 0, ''
        for ch in rest:
            if ch == '[': depth += 1
            if ch == ']': depth -= 1
            if ch == ',' and depth == 0:
                ops.append(cur.strip()); cur = ''
            else: cur += ch
        if cur.strip(): ops.append(cur.strip())
        self.mods = ''
        if ops:
            last = ops[-1].split(None, 1)
            ops[-1] = last[0]
            self.mods = last[1] if len(last) > 1 else ''
        self.ops = ops
        op = self.op
        self.mfma = op.startswith('v_smfmac') or op.startswith('v_mfma')
        self.valu = op.startswith('v_') and not self.mfma
        self.trans = op.replace('_e32', '').replace('_e64', '') in TRANS
        self.dot = op.startswith('v_dot')
        self.dpp = '_dpp' in op
        self.perml = op.startswith('v_permlane')
        self.rdlane = op.startswith('v_readlane') or op.startswith('v_readfirstlane')
        self.vmem = op.startswith('buffer_') or op.startswith('global_')
        self.ds = op.startswith('ds_')
        self.salu = op.startswith('s_')
        R = [regs_of(o) for o in ops]
        w, r = set(), set()
        if self.valu or self.mfma:
            w = set(R[0]) if R else set()
            for x in R[1:]: r |= x
            if self.perml: w |= R[1]; r |= R[0]
            if op.startswith('v_smfmac') or 'fmac' in op or 'dot2c' in op or op.startswith('v_writelane'): r |= R[0]
            if op.startswith('v_cndmask') and len(ops) == 3: r |= {'vcc'}
        elif self.vmem:
            isload = '_load' in op and 'lds' not in self.mods.split()
            if isload:
                w = set(R[0])
                for x in R[1:]: r |= x
            else:
                for x in R: r |= x
        elif self.ds:
            if 'read' in op:
                w = set(R[0])
                for x in R[1:]: r |= x
            else:
                for x in R: r |= x
        elif self.salu:
            if op.startswith('s_cmp') or op.startswith('s_cbranch') or op in ('s_branch', 's_waitcnt', 's_nop', 's_barrier', 's_endpgm', 's_sleep', 's_setprio'):
                for x in R: r |= x
            else:
                w = set(R[0]) if R else set()
                for x in R[1:]: r |= x
        self.w, self.r = w, r
        self.states = 1
        if op == 's_nop': self.states = int(ops[0], 0) + 1

def need(p, c):
    n = 0
    vw = {x for x in p.w if x[0] in 'va' and x != 'vcc'}
    sw = {x for x in p.w if x[0] == 's' or x == 'vcc'}
    if p.valu:
        if vw & c.r:
            if c.dpp or c.perml: n = max(n, 2)
            if c.rdlane: n = max(n, 1)
            if c.mfma: n = max(n, 2)
            if p.trans and c.valu and not c.trans: n = max(n, 1)
        if p.dot and (vw & (c.r | c.w)):
            same_c_only = (c.op == p.op) and not (vw & (regs_of(c.ops[1]) | regs_of(c.ops[2])))
            if not same_c_only: n = max(n, 3)
        if sw & c.r:
            if c.valu or c.mfma: n = max(n, 4 if (c.op.startswith('v_readlane') or c.op.startswith('v_writelane')) else 2)
            if c.vmem: n = max(n, 5)
    if p.mfma:
        D = p.w
        if c.mfma:
            if c.op.startswith('v_smfmac'):
                ab = regs_of(c.ops[1]) | regs_of(c.ops[2]) | regs_of(c.ops[3]); cc = regs_of(c.ops[0])
            else:
                ab = regs_of(c.ops[1]) | regs_of(c.ops[2]); cc = regs_of(c.ops[3])
            if D & ab: n = max(n, 8)
            if D & cc and cc != D: n = max(n, 6)
        elif (c.valu or c.vmem or c.ds) and (D & (c.r | c.w)):
            n = max(n, 8)
    if p.vmem and ('store' in p.op) and ('x4' in p.op or 'x3' in p.op):
        data = regs_of(p.ops[0]) if p.op.startswith('buffer') else regs_of(p.ops[1])
        if data & c.w: n = max(n, 2 if c.valu else 1)
    if p.salu and 'm0' in p.w and c.vmem and 'lds' in c.mods.split():
        n = max(n, 1)
    return n

class Asm:
    def __init__(self):
        self.lines = []
    def __call__(self, text):
        for l in text.split('\n'):
            l = l.strip()
            if l: self.lines.append(l)
    def label(self, name): self.lines.append(name + ':')
    def finish(self, report=None):
        out, hist = [], []
        for l in self.lines:
            body = l.split(';')[0].strip()
            if not body or body.endswith(':') or body.startswith('.'):
                out.append(l if body.endswith(':') or body.startswith('.') else '    ' + l)
                continue
            c = Ins(l)
            dist, pad = 0, 0
            for p in reversed(hist[-12:]):
                nd = need(p, c)
                if nd > dist: pad = max(pad, nd - dist)
                dist += p.states
                if dist >= 12: break
            if pad:
                nop = Ins(f"s_nop {pad-1}")
                hist.append(nop); out.append(f"    s_nop {pad-1}")
                if report is not None: report.append((pad, l))
            hist.append(c)
            if c.op in ('s_branch', 's_endpgm'): hist = []
            out.append('    ' + l)
        return '\n'.join(out) + '\n'
```

```python
from rt import *
sys.path.insert(0,"gen")
from asmlib import Asm
def gen(pat, flag="nt", pitch=8192, nblk=14):
    a = Asm()
    a(f"""
    s_memrealtime s[20:21]
    s_memtime s[22:23]
    s_load_dwordx4 s[8:11], s[0:1], 0
    s_and_b32 s4, s2, 7
    s_lshr_b32 s5, s2, 3
    s_mov_b32 s35, 0x20000
    s_mov_b32 s34, 0x4000000
    """)
    if pat == "cur":
        a(f"s_lshl_b32 s54, s4, 10\ns_lshl_b32 s55, s5, 5\ns_add_u32 s54, s54, s55")
    elif pat == "perm":
        a(f"s_lshr_b32 s54, s5, 2\ns_lshl_b32 s54, s54, 10\ns_lshl_b32 s55, s4, 7\ns_add_u32 s54, s54, s55\ns_and_b32 s55, s5, 3\ns_lshl_b32 s55, s55, 5\ns_add_u32 s54, s54, s55")
    elif pat == "wo":
        a(f"s_mul_i32 s54, s4, {nblk*32*pitch}\ns_min_u32 s55, s5, 27\ns_lshl_b32 s55, s55, 5\ns_add_u32 s54, s54, s55")
    elif pat == "dense":
        a(f"s_mul_i32 s54, s2, {nblk*1024}")
    elif pat == "denseq":
        a(f"s_lshl_b32 s54, s4, 10\ns_lshr_b32 s55, s5, 2\ns_lshl_b32 s55, s55, 7\ns_add_u32 s54, s54, s55\ns_and_b32 s55, s5, 3\ns_mul_i32 s55, s55, {112*8192}\ns_add_u32 s54, s54, s55")
    if pat == "dense":
        a("v_lshlrev_b32 v16, 4, v0"); step = 1024
    elif pat == "denseq":
        a(f"v_lshrrev_b32 v16, 3, v0\nv_lshlrev_b32 v16, 13, v16\nv_and_b32 v18, 7, v0\nv_lshl_add_u32 v16, v18, 4, v16"); step = 8*8192
    else:
        a(f"v_lshrrev_b32 v16, 1, v0\nv_mul_u32_u24 v16, {pitch}, v16\nv_and_b32 v18, 1, v0\nv_lshl_add_u32 v16, v18, 4, v16"); step = 32*pitch
    a(f"""
    s_mov_b32 s47, 0
    s_mov_b32 m0, 0
    s_waitcnt lgkmcnt(0)
    s_memtime s[24:25]
    s_add_u32 s32, s8, s54
    s_addc_u32 s33, s9, 0
    L_l:
    buffer_load_dwordx4 v16, s[32:35], s47 offen {flag} lds
    s_add_u32 m0, m0, 1024
    s_add_u32 s47, s47, {step}
    s_cmp_lt_u32 s47, {nblk*step}
    s_cbranch_scc1 L_l
    s_memtime s[26:27]
    s_waitcnt vmcnt({nblk-1})
    s_memtime s[28:29]
    s_waitcnt vmcnt(0)
    s_memtime s[30:31]
    s_waitcnt lgkmcnt(0)
    s_sub_u32 s24, s24, s22
    s_sub_u32 s26, s26, s22
    s_sub_u32 s28, s28, s22
    s_sub_u32 s30, s30, s22
    v_mov_b32 v4, s24
    v_mov_b32 v5, s26
    v_mov_b32 v6, s28
    v_mov_b32 v7, s30
    s_lshl_b32 s54, s2, 4
    v_mov_b32 v1, s54
    global_store_dwordx4 v1, v[4:7], s[10:11]
    s_endpgm
    """)
    return """; @launch grid=(256,1,1) block=(64,1,1) lds=100000
.amdgcn_target "amdgcn-amd-amdhsa--gfx950"
.text
.globl wq_kernel
.p2align 8
.type wq_kernel,@function
wq_kernel:
""" + a.finish() + """.section .rodata,"a"
.p2align 6
.amdhsa_kernel wq_kernel
  .amdhsa_next_free_vgpr 32
  .amdhsa_next_free_sgpr 64
  .amdhsa_accum_offset 32
  .amdhsa_group_segment_fixed_size 0
  .amdhsa_kernarg_size 16
  .amdhsa_user_sgpr_count 2
  .amdhsa_user_sgpr_kernarg_segment_ptr 1
  .amdhsa_system_sgpr_workgroup_id_x 1
.end_amdhsa_kernel
"""
if __name__=="__main__":
    cfgs = [dict(pat="cur"), dict(pat="cur",flag=""), dict(pat="perm"), dict(pat="dense"), dict(pat="denseq"), dict(pat="wo",pitch=896,nblk=16), dict(pat="wo",pitch=896,nblk=16,flag=""), dict(pat="cur",nblk=4), dict(pat="dense",nblk=1)]
    if len(sys.argv)>1:
        for c in cfgs:
            open("wq_x.s","w").write(gen(**c)); build("wq_x.s","wq_kernel",2)
        raise SystemExit
    W = DeviceBuffer(64<<20); out = DeviceBuffer(4096); big = DeviceBuffer(1<<30)
    memset(W, 1)
    for c in cfgs:
        open("wq_x.s","w").write(gen(**c))
        co,(g,blk,lds) = build("wq_x.s","wq_kernel",2)
        k = AsmKernel(co,"wq_kernel")
        res=[]
        for rep in range(7):
            memset(big,rep); sync()
            k.launch(g,blk,kargs([W.ptr,out.ptr]),lds); sync()
            o = out.to_numpy(np.uint32,(256,4))
            res.append(list(np.median(o,axis=0))+list(o.max(axis=0)))
        print(c, "karg, issued, first, all (med | max):", np.median(np.array(res),axis=0).astype(int))
        k.unload()
```

```python
from rt import *
D = "row_mask:0xf bank_mask:0xf"
SM = "v_smfmac_f32_16x16x64_bf16 v[20:23], v[4:7], v[8:15], v16"
SM2 = "v_smfmac_f32_16x16x64_bf16 v[24:27], v[4:7], v[8:15], v16"
MF = "v_mfma_f32_16x16x32_bf16 v[20:23], v[4:7], v[8:11], v[20:23]"
RD="ds_read_b128 v[30:33], v17\nds_read_b64 v[34:35], v19\nds_read_b64 v[36:37], v19 offset:2048\nds_read_b64 v[38:39], v19 offset:4096\nds_read_b64 v[40:41], v19 offset:6144\ns_waitcnt lgkmcnt(0)"
W1="ds_write_b32 v53, v4\nds_write_b128 v18, v[4:7]\n"
R2="ds_read_b128 v[30:33], v17\nds_read_b128 v[34:37], v18\n"
WT="s_waitcnt lgkmcnt(0)\n"
def V(n): return f".rept {n}\nv_add_f32 v42, v42, v43\n.endr\n"
def F(n): return f".rept {n}\nv_mov_b32 v44, v45\n.endr\n"
MF2="v_mfma_f32_16x16x32_bf16 v[20:23], v[8:11], v[34:37], 0\n"
tests = {
 "base": W1+WT+"s_barrier\n"+R2+WT,
 "+2": W1+WT+"s_barrier\n"+R2+WT+V(2),
 "+4": W1+WT+"s_barrier\n"+R2+WT+V(4),
 "+8": W1+WT+"s_barrier\n"+R2+WT+V(8),
 "+12": W1+WT+"s_barrier\n"+R2+WT+V(12),
 "+24": W1+WT+"s_barrier\n"+R2+WT+V(24),
 "mfma+12": W1+WT+"s_barrier\n"+R2+WT+MF2+V(12),
 "fillR10 +12": W1+WT+"s_barrier\n"+R2+F(10)+WT+V(12),
 "fillW20 R14 +12": W1+F(20)+WT+"s_barrier\n"+R2+F(14)+WT+V(12),
 "fillW16 R10 +12": W1+F(16)+WT+"s_barrier\n"+R2+F(10)+WT+V(12),
 "fillW12 R8 +12": W1+F(12)+WT+"s_barrier\n"+R2+F(8)+WT+V(12),
 "fillW20 +12": W1+F(20)+WT+"s_barrier\n"+R2+WT+V(12),
 "mfW5 R3 +12": W1+(MF+"\n")*5+WT+"s_barrier\n"+R2+(MF+"\n")*3+WT+V(12),
}
def gen(nw):
    s = f"""; @launch grid=(1,1,1) block=({nw*64},1,1) lds=16384
.amdgcn_target "amdgcn-amd-amdhsa--gfx950"
.text
.globl is_kernel
.p2align 8
.type is_kernel,@function
is_kernel:
    s_load_dwordx2 s[8:9], s[0:1], 0
"""
    for r in list(range(1,18))+list(range(20,48)): s += f"    v_mov_b32 v{r}, 0\n"
    s += "    v_lshlrev_b32 v18, 4, v0\n    v_lshlrev_b32 v19, 3, v0\n    v_mov_b32 v50, 0\n    v_lshrrev_b32 v55, 6, v0\n    v_and_b32 v56, 63, v0\n    v_lshlrev_b32 v18, 4, v56\n    v_lshl_add_u32 v18, v55, 11, v18\n    v_and_b32 v57, 15, v0\n    v_lshlrev_b32 v52, 5, v57\n    v_bfe_u32 v57, v0, 4, 1\n    v_lshl_add_u32 v52, v57, 4, v52\n    v_bfe_u32 v57, v0, 5, 1\n    v_lshl_add_u32 v52, v57, 10, v52\n    v_lshl_add_u32 v52, v55, 11, v52\n    v_lshlrev_b32 v53, 2, v0\n    v_lshlrev_b32 v54, 2, v56\n    s_mov_b32 s41, 0\n    s_mov_b32 s12, 0\n    s_waitcnt lgkmcnt(0)\nL_top:\n"
    for k,(n,t) in enumerate(tests.items()):
        s += f"    s_barrier\n    s_cmp_lg_u32 s41, 0\n    s_memtime s[20:21]\n    s_waitcnt lgkmcnt(0)\n.rept 16\n{t}\n.endr\n    s_memtime s[22:23]\n    s_waitcnt lgkmcnt(0)\n    s_sub_u32 s22, s22, s20\n    s_nop 7\n    v_writelane_b32 v50, s22, {k}\n"
    s += """    s_add_u32 s12, s12, 1
    s_cmp_lt_u32 s12, 2
    s_cbranch_scc1 L_top
    v_lshlrev_b32 v1, 2, v0
    global_store_dword v1, v50, s[8:9]
L_x:
    s_endpgm
.section .rodata,"a"
.p2align 6
.amdhsa_kernel is_kernel
  .amdhsa_next_free_vgpr 64
  .amdhsa_next_free_sgpr 64
  .amdhsa_accum_offset 64
  .amdhsa_group_segment_fixed_size 0
  .amdhsa_kernarg_size 16
  .amdhsa_user_sgpr_count 2
  .amdhsa_user_sgpr_kernarg_segment_ptr 1
  .amdhsa_system_sgpr_workgroup_id_x 1
.end_amdhsa_kernel
"""
    return s
res = {}
for nw in (1,4):
    open("is_x.s","w").write(gen(nw))
    co,(g,blk,lds) = build("is_x.s","is_kernel",1)
    if len(sys.argv)>1: continue
    k = AsmKernel(co,"is_kernel"); out = DeviceBuffer(4096)
    k.launch(g,blk,kargs([out.ptr]),lds); sync()
    res[nw] = out.to_numpy(np.uint32,(nw,64)); k.unload()
if res:
    for k,n in enumerate(tests): print(f"{n:16s} 1 wave: {(res[1][0,k]-40)/16:6.1f}   4 waves: {(res[4][:,k].max()-40)/16:6.1f}")
```

```python
from rt import *
sys.path.insert(0,"gen")
from asmlib import Asm
RS = 0x8000
def gen(rounds=200, ncons=8, delay=1, depth=3, gap=48, stride=128):
    a = Asm()
    sh = {64:6,128:7}[stride]
    a(f"""
    s_load_dwordx4 s[28:31], s[0:1], 0
    s_and_b32 s4, s2, 7
    s_lshr_b32 s5, s2, 3
    s_cmp_ge_u32 s5, 8
    s_cbranch_scc1 L_exit
    v_lshrrev_b32 v1, 6, v0
    v_and_b32 v0, 63, v0
    v_readfirstlane_b32 s3, v1
    s_mov_b32 s53, 0
    s_mov_b32 s12, 0
    s_mov_b32 s13, 0
    v_mov_b32 v30, 1.0
    v_mov_b64 v[32:33], 0
    s_lshl_b32 s54, s5, 2
    s_add_u32 s54, s54, s3
    s_lshl_b32 s54, s54, {sh}
    v_lshrrev_b32 v5, 4, v0
    v_lshlrev_b32 v5, 12, v5
    v_and_b32 v6, 15, v0
    v_lshl_add_u32 v5, v6, 2, v5
    v_add_u32 v5, s54, v5
    v_add_u32 v8, 0x4000, v5
    s_lshl_b32 s54, s4, 12
    s_lshl_b32 s55, s3, {sh+3}
    s_add_u32 s54, s54, s55
    v_lshrrev_b32 v7, 3, v0
    v_lshlrev_b32 v7, {sh}, v7
    v_and_b32 v6, 7, v0
    v_lshl_add_u32 v7, v6, 3, v7
    v_add_u32 v7, s54, v7
    v_cmp_eq_u32 s[40:41], 0, v6
    v_cmp_eq_u32 s[42:43], 7, v6
    s_mov_b32 s44, 0x41000000
    s_waitcnt lgkmcnt(0)
    L_round:
    s_cmp_eq_u32 s12, 10
    s_cbranch_scc0 L_ns
    s_memtime s[20:21]
    L_ns:
    global_atomic_add_f32 v5, v30, s[28:29]
    global_atomic_add_f32 v8, v30, s[28:29]
    s_cmp_ge_u32 s5, {ncons}
    s_cbranch_scc1 L_wait
    s_sleep {delay}
    """)
    LD = "global_atomic_or_x2 v[40:41], v7, v[32:33], s[28:29] sc0"
    for d in range(depth-1):
        a(LD)
        g = gap
        while g > 0: a(f"s_nop {min(g,16)-1}"); g -= 16
    a(f"""
    L_p:
    {LD}
    s_add_u32 s53, s53, 1
    s_cmp_gt_u32 s53, 0x80000
    s_cbranch_scc1 L_end
    s_waitcnt vmcnt({depth-1})
    v_mov_b64 v[42:43], v[40:41]
    v_cmp_ne_u32 vcc, s44, v42
    v_cmp_ne_u32 s[46:47], s44, v43
    s_and_b64 s[48:49], vcc, s[40:41]
    s_and_b64 s[50:51], s[46:47], s[42:43]
    s_or_b64 s[48:49], s[48:49], s[50:51]
    s_cbranch_scc1 L_p
    s_or_b64 s[48:49], vcc, s[46:47]
    s_cselect_b32 s54, 1, 0
    s_add_u32 s13, s13, s54
    s_branch L_nx
    L_wait:
    s_sleep {delay+8}
    L_w2:
    {LD}
    s_add_u32 s53, s53, 1
    s_cmp_gt_u32 s53, 0x80000
    s_cbranch_scc1 L_end
    s_waitcnt vmcnt(0)
    v_cmp_ne_u32 vcc, s44, v40
    s_cbranch_vccnz L_w2
    L_nx:
    s_barrier
    v_add_u32 v5, {RS}, v5
    v_add_u32 v8, {RS}, v8
    v_add_u32 v7, {RS}, v7
    s_add_u32 s12, s12, 1
    s_cmp_lt_u32 s12, {rounds}
    s_cbranch_scc1 L_round
    L_end:
    s_memtime s[22:23]
    s_waitcnt lgkmcnt(0) vmcnt(0)
    s_sub_u32 s22, s22, s20
    v_mov_b32 v10, s22
    v_mov_b32 v11, s53
    v_mov_b32 v12, s13
    v_mov_b32 v13, 0
    s_lshl_b32 s54, s2, 2
    s_add_u32 s54, s54, s3
    s_lshl_b32 s54, s54, 4
    v_mov_b32 v14, s54
    global_store_dwordx4 v14, v[10:13], s[30:31]
    L_exit:
    s_endpgm
    """)
    return """; @launch grid=(256,1,1) block=(256,1,1) lds=100000
.amdgcn_target "amdgcn-amd-amdhsa--gfx950"
.text
.globl ge_kernel
.p2align 8
.type ge_kernel,@function
ge_kernel:
""" + a.finish() + """.section .rodata,"a"
.p2align 6
.amdhsa_kernel ge_kernel
  .amdhsa_next_free_vgpr 64
  .amdhsa_next_free_sgpr 64
  .amdhsa_accum_offset 64
  .amdhsa_group_segment_fixed_size 0
  .amdhsa_kernarg_size 16
  .amdhsa_user_sgpr_count 2
  .amdhsa_user_sgpr_kernarg_segment_ptr 1
  .amdhsa_system_sgpr_workgroup_id_x 1
.end_amdhsa_kernel
"""
if __name__=="__main__":
    cfgs = [dict(), dict(delay=3), dict(delay=5), dict(depth=2,gap=64,delay=3), dict(depth=2,gap=64,delay=5), dict(depth=2,gap=80,delay=6), dict(depth=1,delay=6), dict(depth=1,delay=9), dict(depth=3,gap=60,delay=4), dict(stride=64,depth=2,gap=64,delay=5)]
    if len(sys.argv)>1:
        for c in cfgs:
            open("ge_x.s","w").write(gen(**c)); build("ge_x.s","ge_kernel",2)
        raise SystemExit
    buf = DeviceBuffer(64<<20); out = DeviceBuffer(16384)
    for c in cfgs:
        open("ge_x.s","w").write(gen(**c))
        co,(g,blk,lds) = build("ge_x.s","ge_kernel",2)
        k = AsmKernel(co,"ge_kernel")
        res=[]
        for rep in range(3):
            memset(buf,0); memset(out,0); sync()
            k.launch(g,blk,kargs([buf.ptr,out.ptr]),lds); sync()
            o = out.to_numpy(np.uint32,(256,4))
            res.append((int(np.median(o[:,0])/190), round(float(np.median(o[:,1]))/200,1), int(o[:,2].sum())))
        print(c, "clk/round, polls, torn:", res)
        k.unload()
```

```python
from rt import *
sys.path.insert(0,"gen")
from asmlib import Asm
RS = 0x10000
def gen(rounds=200, nc=8, nrep=8, wide=True, delay=8, depth=3, gap=48, work=5):
    a = Asm()
    rsh = {8:0,4:1,2:2,1:3}[nrep]
    a(f"""
    s_load_dwordx4 s[28:31], s[0:1], 0
    s_and_b32 s4, s2, 7
    s_lshr_b32 s5, s2, 3
    s_cmp_ge_u32 s5, 16
    s_cbranch_scc1 L_exit
    v_lshrrev_b32 v1, 6, v0
    v_and_b32 v0, 63, v0
    v_readfirstlane_b32 s3, v1
    s_mov_b32 s53, 0
    s_mov_b32 s12, 0
    s_mov_b32 s13, 0
    v_mov_b32 v30, 1.0
    v_mov_b64 v[32:33], 0
    s_lshl_b32 s54, s4, 7
    s_add_u32 s54, s54, 0x8000
    v_min_u32 v9, {nc-1}, v0
    v_lshl_add_u32 v9, v9, 2, s54
    s_lshl_b32 s55, s5, 2
    s_add_u32 s54, s54, s55
    v_mov_b32 v10, s54
    s_waitcnt lgkmcnt(0)
    s_cmp_lt_u32 s5, 8
    s_cbranch_scc1 L_cons
    ; ---- producer
    s_sub_u32 s54, s5, 8
    s_lshl_b32 s54, s54, 2
    s_add_u32 s54, s54, s3
    s_lshl_b32 s54, s54, 10
    v_lshrrev_b32 v5, 4, v0
    v_lshlrev_b32 v5, 7, v5
    v_and_b32 v6, 15, v0
    v_lshl_add_u32 v5, v6, 2, v5
    v_add_u32 v5, s54, v5
    L_pr:
    global_load_dword v12, v9, s[28:29] sc1
    s_add_u32 s53, s53, 1
    s_cmp_gt_u32 s53, 0x80000
    s_cbranch_scc1 L_exit
    s_waitcnt vmcnt(0)
    v_cmp_eq_u32 vcc, 0, v12
    s_cbranch_vccnz L_pr
    """)
    if wide:
        if nrep < 4: a(f"s_mov_b64 exec, {hex((1<<(16*nrep))-1)}" if nrep == 1 else "s_mov_b32 exec_hi, 0")
        a("global_atomic_add_f32 v5, v30, s[28:29]")
        if nrep == 8: a("global_atomic_add_f32 v5, v30, s[28:29] offset:512")
    else:
        a("s_mov_b64 exec, 0xffff")
        for d in range(nrep): a(f"global_atomic_add_f32 v5, v30, s[28:29] offset:{128*d}")
    a(f"""
    s_mov_b64 exec, -1
    v_add_u32 v5, {RS}, v5
    v_add_u32 v9, {RS}, v9
    s_sleep 4
    global_load_dword v12, v9, s[28:29] sc1
    s_add_u32 s12, s12, 1
    s_cmp_lt_u32 s12, {rounds}
    s_cbranch_scc1 L_pr
    s_endpgm
    L_cons:
    s_cmp_ge_u32 s5, {nc}
    s_cbranch_scc1 L_exit
    s_lshr_b32 s54, s4, {rsh}
    s_lshl_b32 s54, s54, 7
    s_lshl_b32 s55, s3, 13
    s_add_u32 s54, s54, s55
    v_lshrrev_b32 v7, 3, v0
    v_lshlrev_b32 v7, 10, v7
    v_and_b32 v6, 7, v0
    v_lshl_add_u32 v7, v6, 3, v7
    v_add_u32 v7, s54, v7
    v_cmp_eq_u32 s[42:43], 7, v6
    s_mov_b32 s44, 0x41000000
    L_round:
    s_cmp_eq_u32 s12, 10
    s_cbranch_scc0 L_ns
    s_memtime s[20:21]
    L_ns:
    s_cmp_eq_u32 s3, 0
    s_cbranch_scc0 L_nf
    global_store_dword v10, v30, s[28:29]
    L_nf:
    s_sleep {delay}
    """)
    LD = "global_atomic_or_x2 v[40:41], v7, v[32:33], s[28:29] sc0"
    for d in range(depth-1):
        a(LD)
        g = gap
        while g > 0: a(f"s_nop {min(g,16)-1}"); g -= 16
    a(f"""
    L_p:
    {LD}
    s_add_u32 s53, s53, 1
    s_cmp_gt_u32 s53, 0x80000
    s_cbranch_scc1 L_end
    s_waitcnt vmcnt({depth-1})
    v_mov_b64 v[42:43], v[40:41]
    v_cmp_ne_u32 vcc, s44, v42
    v_cmp_ne_u32 s[46:47], s44, v43
    s_and_b64 s[48:49], vcc, s[42:43]
    s_cbranch_scc1 L_p
    s_or_b64 s[48:49], vcc, s[46:47]
    s_cselect_b32 s54, 1, 0
    s_add_u32 s13, s13, s54
    s_barrier
    s_sleep {work}
    v_add_u32 v7, {RS}, v7
    v_add_u32 v10, {RS}, v10
    s_add_u32 s12, s12, 1
    s_cmp_lt_u32 s12, {rounds}
    s_cbranch_scc1 L_round
    L_end:
    s_memtime s[22:23]
    s_waitcnt lgkmcnt(0) vmcnt(0)
    s_sub_u32 s22, s22, s20
    v_mov_b32 v10, s22
    v_mov_b32 v11, s53
    v_mov_b32 v12, s13
    v_mov_b32 v13, 0
    s_lshl_b32 s54, s2, 2
    s_add_u32 s54, s54, s3
    s_lshl_b32 s54, s54, 4
    v_mov_b32 v14, s54
    global_store_dwordx4 v14, v[10:13], s[30:31]
    L_exit:
    s_endpgm
    """)
    return """; @launch grid=(256,1,1) block=(256,1,1) lds=100000
.amdgcn_target "amdgcn-amd-amdhsa--gfx950"
.text
.globl ge_kernel
.p2align 8
.type ge_kernel,@function
ge_kernel:
""" + a.finish() + """.section .rodata,"a"
.p2align 6
.amdhsa_kernel ge_kernel
  .amdhsa_next_free_vgpr 64
  .amdhsa_next_free_sgpr 64
  .amdhsa_accum_offset 64
  .amdhsa_group_segment_fixed_size 0
  .amdhsa_kernarg_size 16
  .amdhsa_user_sgpr_count 2
  .amdhsa_user_sgpr_kernarg_segment_ptr 1
  .amdhsa_system_sgpr_workgroup_id_x 1
.end_amdhsa_kernel
"""
if __name__=="__main__":
    cfgs = eval(sys.argv[1])
    if len(sys.argv)>2:
        for c in cfgs:
            open("ge_x.s","w").write(gen(**c)); build("ge_x.s","ge_kernel",2)
        raise SystemExit
    buf = DeviceBuffer(64<<20); out = DeviceBuffer(16384)
    for c in cfgs:
        open("ge_x.s","w").write(gen(**c))
        co,(g,blk,lds) = build("ge_x.s","ge_kernel",2)
        k = AsmKernel(co,"ge_kernel")
        res=[]
        for rep in range(3):
            memset(buf,0); memset(out,0); sync()
            k.launch(g,blk,kargs([buf.ptr,out.ptr]),lds); sync()
            o = out.to_numpy(np.uint32,(256,4))[:32*c.get('nc',8)]
            res.append((int(np.median(o[:,0])/190), round(float(np.median(o[:,1]))/200,1), int(o[:,2].sum())))
        print(c, "clk/round, polls, torn:", res)
        k.unload()
```
